```python
import torch

def _softmax(x, axis=-1):
    return torch.softmax(x, dim=axis)
def _gelu(x):
    return torch.nn.functional.gelu(x, approximate="tanh")
def _silu(x):
    return torch.nn.functional.silu(x)
def _sigmoid(x):
    return torch.sigmoid(x)
def _layernorm(x, axis=-1, eps=1e-5):
    m = x.mean(dim=axis, keepdim=True)
    v = x.var(dim=axis, keepdim=True, unbiased=False)
    return (x - m) / torch.sqrt(v + eps)
def _scatter_add(tgt, idx, src, axis=0):
    return tgt.clone().index_add_(axis, idx, src)
def _segment_sum(src, seg, n):
    out = torch.zeros((n,) + src.shape[1:], dtype=src.dtype)
    return out.index_add_(0, seg, src)
def _pad(x, pw):
    flat = tuple(v for pair in reversed(pw) for v in pair)
    return torch.nn.functional.pad(x, flat)

kernel_name = 'parallel_sum__mha_block_cached__swiglu_ffn__decode'

def setup_inputs():

    _w = (lambda a: (lambda t: t.to(torch.bfloat16) if t.is_floating_point() else t)(torch.as_tensor(a)))
    def _A_setup():
        B, Sq, D = 4, 1, 512
        H, Sk, Dh = 32, 8192, 128
        return {
            "x": _w((lambda *s: torch.randn(*s, dtype=torch.bfloat16) * 0.05)(B, Sq, D)),
            "k_cache": _w((lambda *s: torch.randn(*s, dtype=torch.bfloat16) * 3.2)(B, H, Sk, Dh)),
            "v_cache": _w((lambda *s: torch.randn(*s, dtype=torch.bfloat16) * 1.6)(B, H, Sk, Dh)),
            "wq": _w((lambda *s: torch.randn(*s, dtype=torch.bfloat16) * 3.2)(D, H * Dh) * (D ** -0.5)),
            "wo": _w((lambda *s: torch.randn(*s, dtype=torch.bfloat16) * 1.6)(H * Dh, D) * ((H * Dh) ** -0.5)),
        }
    _A_in = _A_setup()

    def _B_setup():
        B, S, D, F = 4, 1, 512, 1792
        return {
            "x": _w((lambda *s: torch.randn(*s, dtype=torch.bfloat16) * 0.05)(B, S, D)),
            "w_gate": _w((lambda *s: torch.randn(*s, dtype=torch.bfloat16) * 0.05)(D, F)),
            "w_up": _w((lambda *s: torch.randn(*s, dtype=torch.bfloat16) * 0.05)(D, F)),
            "w_down": _w((lambda *s: torch.randn(*s, dtype=torch.bfloat16) * 0.05)(F, D)),
        }
    _B_in = _B_setup()

    return {
        "A_x": _A_in["x"],
        "A_k_cache": _A_in["k_cache"],
        "A_v_cache": _A_in["v_cache"],
        "A_wq": _A_in["wq"],
        "A_wo": _A_in["wo"],
        "B_x": _B_in["x"],
        "B_w_gate": _B_in["w_gate"],
        "B_w_up": _B_in["w_up"],
        "B_w_down": _B_in["w_down"],
    }

def reference(A_x, A_k_cache, A_v_cache, A_wq, A_wo, B_x, B_w_gate, B_w_up, B_w_down):
    def _A_ref(x, k_cache, v_cache, wq, wo):
        B, Sq, D = x.shape
        H, Dh = 32, 128
        q = (lambda x, *d: x.permute(*d))((x @ wq).reshape(B, Sq, H, Dh), 0, 2, 1, 3)
        scores = torch.einsum("bhqd,bhkd->bhqk", q, k_cache) * (Dh ** -0.5)
        p = _softmax(scores, axis=-1)
        o = torch.einsum("bhqk,bhkd->bhqd", p, v_cache)
        return (lambda x, *d: x.permute(*d))(o, 0, 2, 1, 3).reshape(B, Sq, H * Dh) @ wo

    def _B_ref(x, w_gate, w_up, w_down):
        g = _silu(x @ w_gate)
        u = x @ w_up
        return (g * u) @ w_down

    x = A_x
    xn = _layernorm(x, axis=-1)
    return x + _A_ref(xn, A_k_cache, A_v_cache, A_wq, A_wo) + _B_ref(xn, B_w_gate, B_w_up, B_w_down)
```

```python
import re

TRANS = ("v_exp_f32", "v_log_f32", "v_rcp_f32", "v_rsq_f32", "v_sqrt_f32", "v_sin_f32", "v_cos_f32")


def _regs(tok):
    tok = tok.strip()
    tok = tok.lstrip("-")
    m = re.fullmatch(r"abs\((.*)\)", tok)
    if m:
        tok = m.group(1)
    m = re.fullmatch(r"\|(.*)\|", tok)
    if m:
        tok = m.group(1)
    m = re.fullmatch(r"([vsa])(\d+)", tok)
    if m:
        return [(m.group(1), int(m.group(2)))]
    m = re.fullmatch(r"([vsa])\[(\d+):(\d+)\]", tok)
    if m:
        return [(m.group(1), i) for i in range(int(m.group(2)), int(m.group(3)) + 1)]
    if tok in ("vcc", "exec", "m0", "scc"):
        return [("x", tok)]
    if tok in ("vcc_lo", "vcc_hi"):
        return [("x", "vcc")]
    return []


class Ins:
    __slots__ = ("text", "op", "kind", "rd", "wr", "dpp", "states", "srcc", "lanesel", "storedata", "wide")


class Asm:
    def __init__(self):
        self.lines = []
        self.hist = []
        self.nops_added = 0

    def raw(self, text):
        self.lines.append(text)

    def comment(self, text):
        self.lines.append("  ; " + text)

    def label(self, name, pad=True):
        self.lines.append(name + ":")
        if pad:
            self._emit_nop(4)
        self.hist = []

    def _emit_nop(self, n):
        i = Ins()
        i.text = f"s_nop {n}"
        i.op = "s_nop"
        i.kind = "salu"
        i.rd = set()
        i.wr = set()
        i.dpp = False
        i.states = n + 1
        i.srcc = set()
        i.lanesel = set()
        i.storedata = set()
        i.wide = False
        self.lines.append("  " + i.text)
        self.hist.append(i)

    def parse(self, text):
        i = Ins()
        i.text = text
        body = text.split(";")[0].strip()
        parts = body.split(None, 1)
        op = parts[0]
        i.op = op
        rest = parts[1] if len(parts) > 1 else ""
        ops = []
        depth = 0
        cur = ""
        for ch in rest:
            if ch == "[":
                depth += 1
            elif ch == "]":
                depth -= 1
            if ch == "," and depth == 0:
                ops.append(cur)
                cur = ""
            else:
                cur += ch
        if cur.strip():
            ops.append(cur)
        toks = []
        mods = []
        for k, o in enumerate(ops):
            o = o.strip()
            sp = o.split()
            toks.append(sp[0])
            mods += sp[1:]
        i.dpp = any(m.startswith(("row_", "quad_perm", "wave_")) for m in mods)
        i.states = 1
        i.srcc = set()
        i.lanesel = set()
        i.storedata = set()
        i.wide = False
        rd, wr = set(), set()
        R = lambda t: set(_regs(t))
        if op == "s_nop":
            i.kind = "salu"
            i.states = int(toks[0], 0) + 1
        elif op.startswith("s_"):
            i.kind = "salu"
            if op.startswith(("s_load", "s_memtime", "s_memrealtime")):
                i.kind = "smem"
                wr |= R(toks[0])
                for t in toks[1:]:
                    rd |= R(t)
            elif op.startswith(("s_cmp", "s_cbranch", "s_branch", "s_waitcnt", "s_barrier", "s_endpgm", "s_setprio", "s_sleep", "s_setpc")):
                for t in toks:
                    rd |= R(t)
            else:
                wr |= R(toks[0])
                for t in toks[1:]:
                    rd |= R(t)
                if "saveexec" in op:
                    wr.add(("x", "exec"))
        elif op.startswith("buffer_") or op.startswith("global_"):
            i.kind = "vmem"
            lds = "lds" in mods
            if "store" in op or ("atomic" in op):
                if op.startswith("buffer_"):
                    i.storedata = R(toks[0])
                    for t in toks:
                        rd |= R(t)
                    if "atomic" in op and "sc0" in mods:
                        wr |= R(toks[0])
                else:
                    for t in toks:
                        rd |= R(t)
                    i.storedata = R(toks[1])
                i.wide = ("x4" in op) or ("x3" in op)
            elif lds:
                for t in toks:
                    rd |= R(t)
                rd.add(("x", "m0"))
                i.kind = "dma"
            else:
                wr |= R(toks[0])
                for t in toks[1:]:
                    rd |= R(t)
        elif op.startswith("ds_"):
            i.kind = "ds"
            if op.startswith(("ds_write", "ds_add", "ds_max", "ds_min")) and "rtn" not in op:
                for t in toks:
                    rd |= R(t)
            else:
                wr |= R(toks[0])
                for t in toks[1:]:
                    rd |= R(t)
        elif op.startswith("v_"):
            i.kind = "valu"
            if op.startswith("v_mfma"):
                i.kind = "mfma"
                wr |= R(toks[0])
                for t in toks[1:]:
                    rd |= R(t)
                i.srcc = R(toks[3])
            elif op.startswith("v_permlane"):
                i.kind = "perm"
                wr |= R(toks[0]) | R(toks[1])
                rd |= R(toks[0]) | R(toks[1])
            elif op.startswith(("v_readlane", "v_readfirstlane")):
                i.kind = "rdlane"
                wr |= R(toks[0])
                rd |= R(toks[1])
                if len(toks) > 2:
                    i.lanesel = R(toks[2])
                    rd |= R(toks[2])
            elif op.startswith("v_cmp"):
                wr |= R(toks[0])
                for t in toks[1:]:
                    rd |= R(t)
            elif op.startswith(("v_add_co", "v_sub_co", "v_addc_co", "v_subb_co", "v_div_scale")):
                wr |= R(toks[0]) | R(toks[1])
                for t in toks[2:]:
                    rd |= R(t)
            else:
                wr |= R(toks[0])
                for t in toks[1:]:
                    rd |= R(t)
                if op.startswith(("v_fmac", "v_dot2c", "v_pk_fmac", "v_mac")):
                    rd |= R(toks[0])
                if i.dpp:
                    rd |= R(toks[0])
                if op.startswith("v_div_fmas"):
                    rd.add(("x", "vcc"))
                if op.startswith("v_dot"):
                    i.kind = "dot"
                    i.srcc = R(toks[3]) if len(toks) > 3 else R(toks[0])
                if op.split("_e")[0] in TRANS or op in TRANS:
                    i.kind = "trans"
        else:
            raise Exception("unknown op " + text)
        i.rd, i.wr = rd, wr
        return i

    @staticmethod
    def _isvalu(k):
        return k in ("valu", "dot", "trans", "perm", "rdlane", "mfma")

    def need(self, p, c):
        n = 0
        pv = self._isvalu(p.kind) and p.kind != "mfma"
        cv = self._isvalu(c.kind)
        pw_v = {r for r in p.wr if r[0] in "va"}
        pw_s = {r for r in p.wr if r[0] == "s" or r == ("x", "vcc")}
        if pv:
            if c.dpp and (pw_v & c.rd):
                n = max(n, 2)
            if c.kind == "rdlane" and (pw_v & c.rd):
                n = max(n, 1)
            if c.kind == "perm" and (pw_v & c.rd):
                n = max(n, 2)
            if c.kind == "mfma" and (pw_v & c.rd):
                n = max(n, 2)
            if cv and (pw_s & c.rd):
                n = max(n, 2)
                if pw_s & c.lanesel:
                    n = max(n, 4)
                if c.op.startswith("v_div_fmas"):
                    n = max(n, 4)
            if c.kind in ("vmem", "dma") and (pw_s & c.rd):
                n = max(n, 5)
            if c.kind in ("salu", "smem") and (pw_s & c.rd):
                n = max(n, 1)
            if p.kind == "trans" and (pw_v & (c.rd | c.wr)) and c.kind != "trans":
                n = max(n, 1)
            if p.kind == "dot" and (pw_v & (c.rd | c.wr)):
                same_chain = (c.kind == "dot" and c.op == p.op and (pw_v & c.rd) <= c.srcc and not (pw_v & (c.rd - c.srcc)))
                if not same_chain:
                    n = max(n, 3)
        if p.kind == "salu" and ("x", "m0") in p.wr and c.kind == "dma":
            n = max(n, 1)
        if p.kind == "vmem" and p.wide and (p.storedata & c.wr):
            n = max(n, 2)
        if p.kind == "mfma":
            passes = 8 if "32x32" in p.op else 4
            tab_ab = {4: 8, 8: 12}[passes]
            tab_c = {4: 6, 8: 10}[passes]
            if pw_v & (c.rd | c.wr):
                if c.kind == "mfma":
                    if (pw_v & c.rd) and (pw_v & c.rd) <= c.srcc and pw_v == c.srcc and c.op == p.op:
                        pass
                    elif pw_v & (c.rd - c.srcc):
                        n = max(n, tab_ab)
                    else:
                        n = max(n, tab_c)
                else:
                    n = max(n, tab_ab)
            if cv and c.kind != "mfma" and (p.srcc & c.wr):
                n = max(n, {4: 3, 8: 7}[passes])
        return n

    def emit(self, text):
        for t in text.strip().split("\n"):
            t = t.strip()
            if not t:
                continue
            if t.startswith(";"):
                self.lines.append("  " + t)
                continue
            c = self.parse(t)
            dist = 0
            pad = 0
            for p in reversed(self.hist):
                nd = self.need(p, c)
                if nd > dist:
                    pad = max(pad, nd - dist)
                dist += p.states
                if dist >= 20:
                    break
            if pad > 0:
                self.nops_added += 1
                self._emit_nop(pad - 1)
            self.lines.append("  " + t)
            self.hist.append(c)
            if len(self.hist) > 40:
                self.hist = self.hist[-40:]
            if c.op.startswith(("s_branch", "s_endpgm", "s_setpc")):
                self.hist = []

    __call__ = emit

    def text(self):
        return "\n".join(self.lines) + "\n"
```

```python
import sys
from asmlib import Asm

NAME = "parallel_sum__mha_block_cached__swiglu_ffn__decode"

HEADER = open("cdna_kernels/" + NAME + ".s.ref").read().split("; Override launch")[0]

LDS_SC = 0
LDS_XN = 16384
LDS_RA = 24576
LDS_FP = 26624
LDS_MX = 27648
LDS_W = 28672
LDS_TOTAL = 159744

WS_ZA = 0
WS_ZF = 512 * 1024
WS_ML = 1024 * 1024
WS_DBG = 2 * 1024 * 1024
WS_SIZE = 4 * 1024 * 1024

LOG2E = 0x3fb8aa3b
SCALE = 0x3db504f3
EPS = 0x3727c5ac


def kernel1(NB=2, dbg=False):
    a = Asm()
    D = 16 * NB
    DATA = 64
    vTID, vLANE, vKV, vWQ, v1K, vFF, vLW, vSW, vSR = 0, 1, 2, 3, 4, 5, 6, 7, 8
    vM, vL, vP, vPB = 9, 10, 11, 12
    vQ = 14
    vP0, vP1 = 18, 19
    ACC = 20
    T = 28
    AR = 36
    MU = 44
    ACU = 52
    X0, X1, X2, X3 = 60, 61, 62, 63
    sPF = 8
    sX = 12
    sWS = 16
    sOFF, sBASE, sCNT, sW, sB, sH, sJ = 20, 21, 22, 23, 24, 25, 26
    sT0, sT1, sT2, sT3 = 27, 28, 29, 30
    sHI = 31
    sM1 = 32
    sM0 = 34
    pX, pK, pV, pWQ, pWO, pBX, pWG, pWU, pWD, pOUT, pDBG, pWS = range(36, 60, 2)
    sWQ, sWG, sWU, sWD, sWO = 60, 64, 68, 72, 76
    sL2E, sSCALE, sNML = 80, 81, 82
    sLDSW = 83
    sROW = 84

    def srd(s, p, size):
        a(f"s_mov_b32 s{s}, s{p}")
        a(f"s_mov_b32 s{s+1}, s{p+1}")
        a(f"s_mov_b32 s{s+2}, {size}")
        a(f"s_mov_b32 s{s+3}, 0x00020000")

    def bf16r(dst, src, tmp=None):
        t = dst if tmp is None else tmp
        a(f"v_cvt_pk_bf16_f32 v{t}, v{src}, v{src}")
        a(f"v_lshlrev_b32 v{dst}, 16, v{t}")

    def wave_allreduce(v, op, tmp_s):
        for r in (8, 4, 2, 1):
            a(f"{op}_dpp v{v}, v{v}, v{v} row_ror:{r} row_mask:0xf bank_mask:0xf")
        for k in range(4):
            a(f"v_readlane_b32 s{tmp_s+k}, v{v}, {16*k}")
        a(f"v_mov_b32 v{v}, s{tmp_s}")
        for k in range(1, 4):
            a(f"{op} v{v}, s{tmp_s+k}, v{v}")

    def pf_load(slot):
        i = slot & 15
        r = DATA + 4 * (slot % D)
        a(f"buffer_load_dwordx4 v[{r}:{r+3}], v{vKV}, s[{sPF}:{sPF+3}], s{sOFF} offen offset:{(i&3)*1024} nt")
        if (i & 3) == 3:
            a(f"s_add_u32 s{sOFF}, s{sOFF}, 16384")

    def unpack_fma(r, acc, mul):
        for k in range(4):
            a(f"v_lshlrev_b32 v{T+2*k}, 16, v{r+k}")
            a(f"v_and_b32 v{T+2*k+1}, s{sHI}, v{r+k}")
        if mul % 2 == 0:
            mods = "op_sel_hi:[1,0,1]"
            mp = f"v[{mul}:{mul+1}]"
        else:
            mods = "op_sel:[0,1,0] op_sel_hi:[1,1,1]"
            mp = f"v[{mul-1}:{mul}]"
        for k in range(4):
            a(f"v_pk_fma_f32 v[{acc+2*k}:{acc+2*k+1}], v[{T+2*k}:{T+2*k+1}], {mp}, v[{acc+2*k}:{acc+2*k+1}] {mods}")

    def zero(base, n):
        for k in range(n):
            a(f"v_mov_b32 v{base+k}, 0")

    def lds_gemv(nloads, off0, pregs):
        NBUF = 4
        for i in range(min(NBUF - 1, nloads)):
            a(f"ds_read_b128 v[{AR+4*i}:{AR+4*i+3}], v{vLW} offset:{off0+i*1024}")
        for i in range(nloads):
            nxt = i + NBUF - 1
            if nxt < nloads:
                rb = AR + 4 * (nxt % NBUF)
                a(f"ds_read_b128 v[{rb}:{rb+3}], v{vLW} offset:{off0+nxt*1024}")
            outstanding = min(nloads - 1 - i, NBUF - 1)
            a(f"v_mov_b32_dpp v{vPB}, v{pregs[i>>4]} row_newbcast:{i&15} row_mask:0xf bank_mask:0xf")
            a(f"s_waitcnt lgkmcnt({outstanding})")
            unpack_fma(AR + 4 * (i % NBUF), ACC, vPB)

    def reduce_g(acc):
        for k in range(4):
            a(f"v_permlane32_swap_b32 v{acc+k}, v{acc+k+4}")
        for k in range(4):
            a(f"v_add_f32 v{acc+k}, v{acc+k}, v{acc+k+4}")
        for k in range(2):
            a(f"v_permlane16_swap_b32 v{acc+k}, v{acc+k+2}")
        for k in range(2):
            a(f"v_add_f32 v{acc+k}, v{acc+k}, v{acc+k+2}")

    def dma(srd_s, voff, n, lds_off, step):
        for i in range(n):
            a(f"s_add_u32 m0, s{sLDSW}, {lds_off + i*1024}")
            a(f"buffer_load_dwordx4 v{voff}, s[{srd_s}:{srd_s+3}], s{sT0} offen lds")
            if i != n - 1:
                a(f"s_add_u32 s{sT0}, s{sT0}, {step}")

    K = NAME + "_kernel"
    a.raw(f".globl {K}\n.p2align 8\n.type {K},@function\n{K}:")
    a("s_cmp_ge_u32 s2, 256")
    a("s_cbranch_scc1 L1_done")
    a("s_load_dwordx16 s[36:51], s[0:1], 0")
    a("s_load_dwordx8 s[52:59], s[0:1], 64")
    a(f"v_lshrrev_b32 v{X0}, 6, v{vTID}")
    a(f"v_and_b32 v{vLANE}, 63, v{vTID}")
    a(f"v_readfirstlane_b32 s{sW}, v{X0}")
    a(f"v_lshlrev_b32 v{vKV}, 4, v{vLANE}")
    a(f"v_and_b32 v{X0}, 15, v{vLANE}")
    a(f"v_lshlrev_b32 v{X0}, 4, v{X0}")
    a(f"v_lshrrev_b32 v{X1}, 4, v{vLANE}")
    a(f"v_lshl_add_u32 v{vWQ}, v{X1}, 13, v{X0}")
    a(f"v_lshl_add_u32 v{v1K}, v{X1}, 10, v{X0}")
    a(f"v_lshrrev_b32 v{X0}, 2, v{vLANE}")
    a(f"v_mul_u32_u24 v{X0}, 3584, v{X0}")
    a(f"v_and_b32 v{X1}, 3, v{vLANE}")
    a(f"v_lshl_add_u32 v{vFF}, v{X1}, 4, v{X0}")
    a(f"s_and_b32 s{sT0}, s2, 7")
    a(f"s_lshr_b32 s{sT1}, s2, 4")
    a(f"s_lshl_b32 s{sT1}, s{sT1}, 3")
    a(f"s_add_u32 s{sT0}, s{sT0}, s{sT1}")
    a(f"s_lshr_b32 s{sT1}, s2, 3")
    a(f"s_and_b32 s{sT1}, s{sT1}, 1")
    a(f"s_lshr_b32 s{sB}, s{sT0}, 5")
    a(f"s_and_b32 s{sH}, s{sT0}, 31")
    a(f"s_lshl_b32 s{sJ}, s{sH}, 1")
    a(f"s_add_u32 s{sJ}, s{sJ}, s{sT1}")
    a(f"s_lshl_b32 s{sBASE}, s{sT0}, 21")
    a(f"s_lshl_b32 s{sT1}, s{sT1}, 20")
    a(f"s_add_u32 s{sBASE}, s{sBASE}, s{sT1}")
    a(f"s_lshl_b32 s{sT1}, s{sW}, 12")
    a(f"s_add_u32 s{sBASE}, s{sBASE}, s{sT1}")
    a(f"s_mov_b32 s{sOFF}, s{sBASE}")
    a(f"s_lshl_b32 s{sLDSW}, s{sW}, 15")
    a(f"s_add_u32 s{sLDSW}, s{sLDSW}, {LDS_W}")
    a(f"s_mov_b32 s{sHI}, 0xffff0000")
    a(f"s_mov_b32 s{sM1}, 0xcccccccc")
    a(f"s_mov_b32 s{sM1+1}, 0xcccccccc")
    a(f"s_mov_b32 s{sM0}, 0xaaaaaaaa")
    a(f"s_mov_b32 s{sM0+1}, 0xaaaaaaaa")
    a(f"s_mov_b32 s{sL2E}, {LOG2E}")
    a(f"s_mov_b32 s{sSCALE}, {SCALE}")
    a(f"v_add_u32 v{vLW}, s{sLDSW}, v{vKV}")
    a(f"s_lshl_b32 s{sT1}, s{sW}, 12")
    a(f"s_add_u32 s{sT1}, s{sT1}, {LDS_SC}")
    a(f"v_lshl_add_u32 v{vSW}, v{vLANE}, 2, s{sT1}")
    a(f"v_mov_b32 v{vSR}, v{vSW}")
    a(f"v_mov_b32 v{vM}, 0xff800000")
    a(f"v_mov_b32 v{vL}, 0")
    a("s_waitcnt lgkmcnt(0)")
    srd(sX, pX, 4096)
    srd(sWQ, pWQ, 512 * 4096 * 2)
    srd(sPF, pK, 0x10000000)
    a(f"s_lshl_b32 s{sT0}, s{sB}, 10")
    a(f"buffer_load_dwordx4 v[{AR}:{AR+3}], v{vKV}, s[{sX}:{sX+3}], s{sT0} offen")
    a(f"s_lshl_b32 s{sT0}, s{sW}, 20")
    a(f"s_lshl_b32 s{sT1}, s{sH}, 8")
    a(f"s_add_u32 s{sT0}, s{sT0}, s{sT1}")
    dma(sWQ, vWQ, 32, 0, 32768)
    NFIRST = 30
    for s in range(NFIRST):
        pf_load(s)
    srd(sWG, pWG, 512 * 1792 * 2)
    srd(sWU, pWU, 512 * 1792 * 2)
    srd(sWD, pWD, 1792 * 512 * 2)
    srd(sWO, pWO, 4096 * 512 * 2)
    srd(sWS, pWS, WS_SIZE)
    a(f"s_waitcnt vmcnt({32+NFIRST})")
    for k in range(4):
        a(f"v_lshlrev_b32 v{T+2*k}, 16, v{AR+k}")
        a(f"v_and_b32 v{T+2*k+1}, s{sHI}, v{AR+k}")
    a(f"v_add_f32 v{X0}, v{T}, v{T+1}")
    for k in range(2, 8):
        a(f"v_add_f32 v{X0}, v{X0}, v{T+k}")
    wave_allreduce(X0, "v_add_f32", sT0)
    a(f"v_mul_f32 v{X0}, 0x3b000000, v{X0}")
    a(f"v_mov_b32 v{X1}, 0")
    for k in range(8):
        a(f"v_sub_f32 v{X2}, v{T+k}, v{X0}")
        a(f"v_fmac_f32 v{X1}, v{X2}, v{X2}")
    wave_allreduce(X1, "v_add_f32", sT0)
    a(f"v_mul_f32 v{X1}, 0x3b000000, v{X1}")
    bf16r(X0, X0)
    bf16r(X1, X1)
    a(f"v_add_f32 v{X1}, {EPS}, v{X1}")
    bf16r(X1, X1)
    a(f"v_sqrt_f32 v{X1}, v{X1}")
    bf16r(X1, X1)
    a(f"v_rcp_f32 v{X2}, v{X1}")
    for k in range(8):
        a(f"v_sub_f32 v{T+k}, v{T+k}, v{X0}")
        bf16r(T + k, T + k)
        a(f"v_mul_f32 v{X3}, v{T+k}, v{X2}")
        a(f"v_fma_f32 v{T+k}, -v{X3}, v{X1}, v{T+k}")
        a(f"v_fma_f32 v{T+k}, v{T+k}, v{X2}, v{X3}")
        bf16r(T + k, T + k)
    a(f"s_lshl_b32 s{sT0}, s{sW}, 11")
    a(f"s_add_u32 s{sT0}, s{sT0}, {LDS_XN}")
    a(f"v_lshl_add_u32 v{X0}, v{vLANE}, 5, s{sT0}")
    a(f"ds_write_b128 v{X0}, v[{T}:{T+3}]")
    a(f"ds_write_b128 v{X0}, v[{T+4}:{T+7}] offset:16")
    a(f"s_lshl_b32 s{sT1}, s{sW}, 9")
    a(f"s_add_u32 s{sT0}, s{sT0}, s{sT1}")
    a(f"v_and_b32 v{X0}, 15, v{vLANE}")
    a(f"v_lshlrev_b32 v{X0}, 4, v{X0}")
    a(f"v_lshrrev_b32 v{X1}, 4, v{vLANE}")
    a(f"v_lshl_add_u32 v{X0}, v{X1}, 2, v{X0}")
    a(f"v_add_u32 v{X1}, s{sT0}, v{X0}")
    a(f"ds_read_b32 v{vP0}, v{X1}")
    a(f"ds_read_b32 v{vP1}, v{X1} offset:256")
    zero(ACC, 8)
    a(f"s_waitcnt vmcnt({NFIRST}) lgkmcnt(0)")
    for s in range(NFIRST, D):
        pf_load(s)
    a(f"s_mov_b32 s{sCNT}, {NB}")
    lds_gemv(32, 0, [vP0, vP1])
    reduce_g(ACC)
    a(f"s_lshl_b32 s{sT0}, s{sW}, 9")
    a(f"s_add_u32 s{sT0}, s{sT0}, {LDS_RA}")
    a(f"v_lshlrev_b32 v{X1}, 1, v{X0}")
    a(f"v_add_u32 v{X1}, s{sT0}, v{X1}")
    a(f"ds_write_b64 v{X1}, v[{ACC}:{ACC+1}]")
    a("s_waitcnt lgkmcnt(0)")
    a("s_barrier")
    a(f"s_cmp_ge_u32 s{sJ}, 56")
    a("s_cbranch_scc1 L1_noffn_dma")
    a(f"s_mul_i32 s{sT0}, s{sW}, {128*3584}")
    a(f"s_lshl_b32 s{sT1}, s{sJ}, 6")
    a(f"s_add_u32 s{sT0}, s{sT0}, s{sT1}")
    a(f"s_mov_b32 s{sT2}, s{sT0}")
    dma(sWG, vFF, 8, 0, 16 * 3584)
    a(f"s_mov_b32 s{sT0}, s{sT2}")
    dma(sWU, vFF, 8, 8192, 16 * 3584)
    a(f"s_lshl_b32 s{sT0}, s{sJ}, 15")
    a(f"s_lshl_b32 s{sT1}, s{sW}, 8")
    a(f"s_add_u32 s{sT0}, s{sT0}, s{sT1}")
    dma(sWD, v1K, 8, 16384, 4096)
    a.label("L1_noffn_dma")
    a(f"v_and_b32 v{X1}, 15, v{vLANE}")
    a(f"v_lshlrev_b32 v{X1}, 5, v{X1}")
    for w in range(4):
        a(f"ds_read_b128 v[{AR+8*w}:{AR+8*w+3}], v{X1} offset:{LDS_RA+w*512}") if w < 2 else None
        a(f"ds_read_b128 v[{AR+8*w+4}:{AR+8*w+7}], v{X1} offset:{LDS_RA+w*512+16}") if w < 2 else None
    a(f"ds_read_b128 v[{T}:{T+3}], v{X1} offset:{LDS_RA+2*512}")
    a(f"ds_read_b128 v[{T+4}:{T+7}], v{X1} offset:{LDS_RA+2*512+16}")
    a(f"ds_read_b128 v[{ACC}:{ACC+3}], v{X1} offset:{LDS_RA+3*512}")
    a(f"ds_read_b128 v[{ACC+4}:{ACC+7}], v{X1} offset:{LDS_RA+3*512+16}")
    a("s_waitcnt lgkmcnt(0)")
    for k in range(8):
        a(f"v_add_f32 v{AR+k}, v{AR+k}, v{AR+8+k}")
        a(f"v_add_f32 v{T+k}, v{T+k}, v{ACC+k}")
        a(f"v_add_f32 v{AR+k}, v{AR+k}, v{T+k}")
    for k in range(4):
        a(f"v_cvt_pk_bf16_f32 v{vQ+k}, v{AR+2*k}, v{AR+2*k+1}")
    if dbg:
        a(f"s_lshl_b32 s{sT0}, s{sB}, 6")
        a(f"s_add_u32 s{sT0}, s{sT0}, s{sJ}")
        a(f"s_lshl_b32 s{sT0}, s{sT0}, 12")
        a(f"s_add_u32 s{sT0}, s{sT0}, {WS_DBG}")
        a(f"v_lshlrev_b32 v{X1}, 4, v{vTID}")
        a(f"buffer_store_dwordx4 v[{vQ}:{vQ+3}], v{X1}, s[{sWS}:{sWS+3}], s{sT0} offen")

    def k_tile(buf):
        a(f"s_cmp_eq_u32 s{sCNT}, 16")
        a(f"s_cselect_b32 s{sPF}, s{pV}, s{sPF}")
        a(f"s_cselect_b32 s{sPF+1}, s{pV+1}, s{sPF+1}")
        a(f"s_cselect_b32 s{sOFF}, s{sBASE}, s{sOFF}")
        a(f"s_add_u32 s{sCNT}, s{sCNT}, 1")
        for i in range(16):
            r = DATA + 64 * buf + 4 * i
            a(f"s_waitcnt vmcnt({D-1})")
            a(f"v_dot2_f32_bf16 v{AR+i}, v{r}, v{vQ}, 0")
            for k in range(1, 4):
                a(f"v_dot2_f32_bf16 v{AR+i}, v{r+k}, v{vQ+k}, v{AR+i}")
            pf_load(16 * buf + i)
        for j in range(8):
            a(f"v_add_f32_dpp v{AR+j}, v{AR+j}, v{AR+j} row_ror:8 row_mask:0xf bank_mask:0x3")
            a(f"v_add_f32_dpp v{AR+j}, v{AR+j+8}, v{AR+j+8} row_ror:8 row_mask:0xf bank_mask:0xc")
        for j in range(4):
            a(f"v_add_f32_dpp v{AR+j}, v{AR+j}, v{AR+j} row_shl:4 row_mask:0xf bank_mask:0x5")
            a(f"v_add_f32_dpp v{AR+j}, v{AR+j+4}, v{AR+j+4} row_shr:4 row_mask:0xf bank_mask:0xa")
        a(f"v_cndmask_b32 v{AR+4}, v{AR+2}, v{AR+0}, s[{sM1}:{sM1+1}]")
        a(f"v_cndmask_b32 v{AR+5}, v{AR+3}, v{AR+1}, s[{sM1}:{sM1+1}]")
        a(f"v_cndmask_b32 v{AR+6}, v{AR+0}, v{AR+2}, s[{sM1}:{sM1+1}]")
        a(f"v_cndmask_b32 v{AR+7}, v{AR+1}, v{AR+3}, s[{sM1}:{sM1+1}]")
        a(f"v_add_f32_dpp v{AR+6}, v{AR+4}, v{AR+6} quad_perm:[2,3,0,1] row_mask:0xf bank_mask:0xf")
        a(f"v_add_f32_dpp v{AR+7}, v{AR+5}, v{AR+7} quad_perm:[2,3,0,1] row_mask:0xf bank_mask:0xf")
        a(f"v_cndmask_b32 v{AR+4}, v{AR+7}, v{AR+6}, s[{sM0}:{sM0+1}]")
        a(f"v_cndmask_b32 v{AR+5}, v{AR+6}, v{AR+7}, s[{sM0}:{sM0+1}]")
        a(f"v_add_f32_dpp v{AR+5}, v{AR+4}, v{AR+5} quad_perm:[1,0,3,2] row_mask:0xf bank_mask:0xf")
        bf16r(AR + 5, AR + 5)
        a(f"v_mul_f32 v{AR+5}, s{sSCALE}, v{AR+5}")
        bf16r(AR + 5, AR + 5)
        a(f"ds_write_b32 v{vSW}, v{AR+5}")
        a(f"v_add_u32 v{vSW}, 256, v{vSW}")
        a(f"v_max_f32 v{vM}, v{vM}, v{AR+5}")

    a.label("L1_kloop")
    for buf in range(NB):
        k_tile(buf)
        a(f"s_cmp_eq_u32 s{sCNT}, {NB+16}")
        if buf != NB - 1:
            a("s_cbranch_scc1 L1_kend")
        else:
            a("s_cbranch_scc0 L1_kloop")
    a.label("L1_kend")
    wave_allreduce(vM, "v_max_f32", sT0)
    a(f"s_lshl_b32 s{sT0}, s{sW}, 2")
    a(f"s_add_u32 s{sT0}, s{sT0}, {LDS_MX}")
    a(f"v_mov_b32 v{X1}, s{sT0}")
    a(f"ds_write_b32 v{X1}, v{vM}")
    a(f"s_cmp_ge_u32 s{sJ}, 56")
    a("s_cbranch_scc1 L1_noffn1")
    a(f"s_mul_i32 s{sT0}, s{sW}, {2048+512}")
    a(f"s_add_u32 s{sT0}, s{sT0}, {LDS_XN}")
    a(f"v_lshrrev_b32 v{X1}, 2, v{vLANE}")
    a(f"v_lshl_add_u32 v{X1}, v{X1}, 2, s{sT0}")
    for i in range(8):
        a(f"ds_read_b32 v{MU+i}, v{X1} offset:{64*i}")
    zero(ACC, 8)
    zero(ACU, 8)
    seq = [(i, 0) for i in range(8)] + [(i, 1) for i in range(8)]
    a(f"ds_read_b128 v[{AR}:{AR+3}], v{vLW} offset:0")
    for n, (i, m) in enumerate(seq):
        if n + 1 < len(seq):
            i2, m2 = seq[n + 1]
            rb = AR + 4 * ((n + 1) & 1)
            a(f"ds_read_b128 v[{rb}:{rb+3}], v{vLW} offset:{m2*8192+i2*1024}")
            a("s_waitcnt lgkmcnt(1)")
        else:
            a("s_waitcnt lgkmcnt(0)")
        unpack_fma(AR + 4 * (n & 1), ACU if m else ACC, MU + i)
    for e in range(8):
        a(f"v_permlane32_swap_b32 v{ACC+e}, v{ACU+e}")
    for e in range(8):
        a(f"v_add_f32 v{ACC+e}, v{ACC+e}, v{ACU+e}")
    for e in range(4):
        a(f"v_permlane16_swap_b32 v{ACC+e}, v{ACC+e+4}")
    for e in range(4):
        a(f"v_add_f32 v{ACC+e}, v{ACC+e}, v{ACC+e+4}")
    for e in range(2):
        a(f"v_add_f32_dpp v{ACC+e}, v{ACC+e}, v{ACC+e} row_ror:8 row_mask:0xf bank_mask:0x3")
        a(f"v_add_f32_dpp v{ACC+e}, v{ACC+e+2}, v{ACC+e+2} row_ror:8 row_mask:0xf bank_mask:0xc")
    a(f"v_add_f32_dpp v{ACC}, v{ACC}, v{ACC} row_shl:4 row_mask:0xf bank_mask:0x5")
    a(f"v_add_f32_dpp v{ACC}, v{ACC+1}, v{ACC+1} row_shr:4 row_mask:0xf bank_mask:0xa")
    a(f"v_and_b32 v{X1}, 3, v{vLANE}")
    a(f"v_lshlrev_b32 v{X1}, 3, v{X1}")
    a(f"v_bfe_u32 v{X2}, v{vLANE}, 2, 3")
    a(f"v_add_u32 v{X1}, v{X1}, v{X2}")
    a(f"v_and_b32 v{X2}, 32, v{vLANE}")
    a(f"v_add_u32 v{X1}, v{X1}, v{X2}")
    a(f"s_lshl_b32 s{sT0}, s{sW}, 8")
    a(f"s_add_u32 s{sT0}, s{sT0}, {LDS_FP}")
    a(f"v_lshl_add_u32 v{X1}, v{X1}, 2, s{sT0}")
    a(f"ds_write_b32 v{X1}, v{ACC}")
    a.label("L1_noffn1")
    a("s_waitcnt lgkmcnt(0)")
    a("s_barrier")
    a(f"v_mov_b32 v{X1}, {LDS_MX}")
    a(f"ds_read_b128 v[{T}:{T+3}], v{X1}")
    a(f"ds_read_b32 v{vP}, v{vSR}")
    a(f"s_lshl_b32 s{sROW}, s{sB}, 6")
    a(f"s_add_u32 s{sROW}, s{sROW}, s{sJ}")
    a(f"s_lshl_b32 s{sROW}, s{sROW}, 11")
    zero(ACC, 8)
    a("s_waitcnt lgkmcnt(0)")
    a(f"v_max_f32 v{vM}, v{T}, v{T+1}")
    a(f"v_max3_f32 v{vM}, v{vM}, v{T+2}, v{T+3}")
    a(f"v_mul_f32 v{vM}, s{sL2E}, v{vM}")
    a(f"s_cmp_ge_u32 s{sJ}, 56")
    a("s_cbranch_scc1 L1_noffn2")
    a(f"v_and_b32 v{X1}, 7, v{vLANE}")
    a(f"v_lshlrev_b32 v{X1}, 4, v{X1}")
    a(f"v_lshrrev_b32 v{X2}, 4, v{vLANE}")
    a(f"v_lshl_add_u32 v{X1}, v{X2}, 2, v{X1}")
    for w in range(4):
        a(f"ds_read_b32 v{T+w}, v{X1} offset:{LDS_FP+w*256}")
        a(f"ds_read_b32 v{T+4+w}, v{X1} offset:{LDS_FP+w*256+128}")
    a("s_waitcnt lgkmcnt(0)")
    a(f"v_add_f32 v{T}, v{T}, v{T+1}")
    a(f"v_add_f32 v{T+2}, v{T+2}, v{T+3}")
    a(f"v_add_f32 v{T+4}, v{T+4}, v{T+5}")
    a(f"v_add_f32 v{T+6}, v{T+6}, v{T+7}")
    a(f"v_add_f32 v{T}, v{T}, v{T+2}")
    a(f"v_add_f32 v{T+4}, v{T+4}, v{T+6}")
    bf16r(T, T)
    bf16r(T + 4, T + 4)
    a(f"v_mul_f32 v{T+1}, s{sL2E}, v{T}")
    a(f"v_exp_f32 v{T+1}, -v{T+1}")
    a(f"v_add_f32 v{T+1}, 1.0, v{T+1}")
    a(f"v_rcp_f32 v{T+2}, v{T+1}")
    a(f"v_mul_f32 v{T+3}, v{T}, v{T+2}")
    a(f"v_fma_f32 v{T+5}, -v{T+3}, v{T+1}, v{T}")
    a(f"v_fma_f32 v{T+3}, v{T+5}, v{T+2}, v{T+3}")
    a(f"v_cmp_eq_f32 vcc, 0, v{T+2}")
    a(f"v_mul_f32 v{T+5}, v{T}, v{T+2}")
    a(f"v_cndmask_b32 v{T+3}, v{T+3}, v{T+5}, vcc")
    bf16r(T + 3, T + 3)
    a(f"v_mul_f32 v{T+3}, v{T+3}, v{T+4}")
    bf16r(vP0, T + 3)
    lds_gemv(8, 16384, [vP0])
    reduce_g(ACC)
    a.label("L1_noffn2")
    a(f"v_lshlrev_b32 v{X1}, 1, v{X0}")
    a(f"s_lshl_b32 s{sT0}, s{sW}, 9")
    a(f"s_add_u32 s{sT0}, s{sT0}, s{sROW}")
    a(f"s_add_u32 s{sT1}, s{sT0}, {WS_ZF}")
    a(f"buffer_store_dwordx2 v[{ACC}:{ACC+1}], v{X1}, s[{sWS}:{sWS+3}], s{sT1} offen")
    a(f"s_lshl_b32 s{sT0}, s{sH}, 17")
    a(f"s_lshl_b32 s{sT1}, s{sW}, 8")
    a(f"s_add_u32 s{sT0}, s{sT0}, s{sT1}")
    dma(sWO, v1K, 32, 0, 4096)
    zero(ACC, 8)
    vstart = 16 % NB
    a(f"s_branch L1_v{vstart}")

    def v_tile(buf):
        a(f"s_cmp_eq_u32 s{sCNT}, 32")
        a(f"s_cselect_b32 s{sPF+2}, 0, s{sPF+2}")
        a(f"s_add_u32 s{sCNT}, s{sCNT}, 1")
        a("s_waitcnt lgkmcnt(0)")
        a(f"v_fma_f32 v{X1}, v{vP}, s{sL2E}, -v{vM}")
        a(f"v_add_u32 v{vSR}, 256, v{vSR}")
        a(f"v_exp_f32 v{X1}, v{X1}")
        a(f"ds_read_b32 v{vP}, v{vSR}")
        a(f"v_add_f32 v{vL}, v{vL}, v{X1}")
        for i in range(16):
            r = DATA + 64 * buf + 4 * i
            a(f"v_mov_b32_dpp v{vPB}, v{X1} row_newbcast:{i} row_mask:0xf bank_mask:0xf")
            a(f"s_waitcnt vmcnt({D-1})")
            for k in range(4):
                a(f"v_lshlrev_b32 v{T+2*k}, 16, v{r+k}")
                a(f"v_and_b32 v{T+2*k+1}, s{sHI}, v{r+k}")
            pf_load(16 * buf + i)
            for k in range(4):
                a(f"v_pk_fma_f32 v[{ACC+2*k}:{ACC+2*k+1}], v[{T+2*k}:{T+2*k+1}], v[{vPB}:{vPB+1}], v[{ACC+2*k}:{ACC+2*k+1}] op_sel_hi:[1,0,1]")

    for buf in range(NB):
        a.label(f"L1_v{buf}")
        v_tile(buf)
        a(f"s_cmp_eq_u32 s{sCNT}, {NB+32}")
        if buf != NB - 1:
            a("s_cbranch_scc1 L1_vend")
        else:
            a("s_cbranch_scc0 L1_v0")
    a.label("L1_vend")
    reduce_g(ACC)
    wave_allreduce(vL, "v_add_f32", sT0)
    a(f"s_lshl_b32 s{sT0}, s{sW}, 9")
    a(f"s_add_u32 s{sT0}, s{sT0}, {LDS_RA}")
    a(f"v_lshlrev_b32 v{X1}, 1, v{X0}")
    a(f"v_add_u32 v{X2}, s{sT0}, v{X1}")
    a(f"ds_write_b64 v{X2}, v[{ACC}:{ACC+1}]")
    a(f"s_lshl_b32 s{sT0}, s{sW}, 2")
    a(f"s_add_u32 s{sT0}, s{sT0}, {LDS_MX+16}")
    a(f"v_mov_b32 v{X2}, s{sT0}")
    a(f"ds_write_b32 v{X2}, v{vL}")
    a("s_waitcnt lgkmcnt(0)")
    a("s_barrier")
    for w in range(4):
        a(f"ds_read_b32 v{T+w}, v{X0} offset:{LDS_RA+w*512}")
        a(f"ds_read_b32 v{T+4+w}, v{X0} offset:{LDS_RA+w*512+256}")
    a(f"v_mov_b32 v{X2}, {LDS_MX+16}")
    a(f"ds_read_b128 v[{ACU}:{ACU+3}], v{X2}")
    zero(ACC, 8)
    a("s_waitcnt lgkmcnt(0)")
    a(f"v_add_f32 v{T}, v{T}, v{T+1}")
    a(f"v_add_f32 v{T+2}, v{T+2}, v{T+3}")
    a(f"v_add_f32 v{T+4}, v{T+4}, v{T+5}")
    a(f"v_add_f32 v{T+6}, v{T+6}, v{T+7}")
    a(f"v_add_f32 v{vP0}, v{T}, v{T+2}")
    a(f"v_add_f32 v{vP1}, v{T+4}, v{T+6}")
    a(f"v_add_f32 v{ACU}, v{ACU}, v{ACU+1}")
    a(f"v_add_f32 v{ACU+2}, v{ACU+2}, v{ACU+3}")
    a(f"v_add_f32 v{ACU+1}, v{ACU}, v{ACU+2}")
    a(f"v_mov_b32 v{ACU}, v{vM}")
    a("s_waitcnt vmcnt(0)")
    lds_gemv(32, 0, [vP0, vP1])
    reduce_g(ACC)
    a(f"s_lshl_b32 s{sT0}, s{sW}, 9")
    a(f"s_add_u32 s{sT0}, s{sT0}, s{sROW}")
    a(f"buffer_store_dwordx2 v[{ACC}:{ACC+1}], v{X1}, s[{sWS}:{sWS+3}], s{sT0} offen")
    a(f"s_lshr_b32 s{sT0}, s{sROW}, 8")
    a(f"s_add_u32 s{sT0}, s{sT0}, {WS_ML}")
    a(f"v_cmp_eq_u32 vcc, 0, v{vTID}")
    a(f"v_mov_b32 v{X2}, 0")
    a(f"s_and_saveexec_b64 s[{sT1+1}:{sT1+2}], vcc") if False else None
    a(f"s_and_b64 exec, exec, vcc")
    a("s_cbranch_execz L1_done")
    a(f"buffer_store_dwordx2 v[{ACU}:{ACU+1}], v{X2}, s[{sWS}:{sWS+3}], s{sT0} offen")
    a.label("L1_done", pad=False)
    a("s_endpgm")
    nv = DATA + 64 * NB
    desc = f""".amdhsa_kernel {K}
  .amdhsa_next_free_vgpr {max(nv, 264) if False else nv}
  .amdhsa_next_free_sgpr 96
  .amdhsa_accum_offset {nv}
  .amdhsa_group_segment_fixed_size 0
  .amdhsa_kernarg_size 96
  .amdhsa_user_sgpr_count 2
  .amdhsa_user_sgpr_kernarg_segment_ptr 1
  .amdhsa_system_sgpr_workgroup_id_x 1
.end_amdhsa_kernel
"""
    return a.text(), desc


def kernel2():
    a = Asm()
    K = "final_reduce_kernel"
    a.raw(f".globl {K}\n.p2align 8\n.type {K},@function\n{K}:")
    a("s_cmp_ge_u32 s2, 32")
    a("s_cbranch_scc1 L2_done")
    a("s_load_dwordx2 s[4:5], s[0:1], 0")
    a("s_load_dwordx2 s[8:9], s[0:1], 72")
    a("s_load_dwordx2 s[12:13], s[0:1], 88")
    a("v_lshrrev_b32 v2, 6, v0")
    a("v_and_b32 v1, 63, v0")
    a("v_readfirstlane_b32 s20, v2")
    a("s_lshr_b32 s21, s2, 3")
    a("s_and_b32 s22, s2, 7")
    a("s_mov_b32 s6, 4096")
    a("s_mov_b32 s7, 0x00020000")
    a("s_mov_b32 s10, 4096")
    a("s_mov_b32 s11, 0x00020000")
    a(f"s_mov_b32 s14, {WS_SIZE}")
    a("s_mov_b32 s15, 0x00020000")
    a("s_lshl_b32 s23, s21, 6")
    a("s_lshl_b32 s24, s20, 4")
    a("s_add_u32 s23, s23, s24")
    a("s_lshl_b32 s24, s23, 11")
    a("s_lshl_b32 s25, s22, 8")
    a("s_add_u32 s24, s24, s25")
    a(f"s_add_u32 s25, s24, {WS_ZF}")
    a("s_lshl_b32 s26, s23, 3")
    a(f"s_add_u32 s26, s26, {WS_ML}")
    a("v_lshlrev_b32 v3, 2, v1")
    a("v_and_b32 v4, 15, v1")
    a("v_lshlrev_b32 v4, 3, v4")
    a("v_lshlrev_b32 v5, 1, v1")
    a("s_lshl_b32 s27, s21, 10")
    a("s_lshl_b32 s28, s22, 7")
    a("s_add_u32 s27, s27, s28")
    a("s_waitcnt lgkmcnt(0)")
    a("buffer_load_dwordx2 v[6:7], v4, s[12:15], s26 offen")
    for jj in range(16):
        a(f"buffer_load_dword v{16+jj}, v3, s[12:15], s24 offen offset:{(jj&1)*2048}")
        if jj & 1:
            a("s_add_u32 s24, s24, 4096")
    for jj in range(16):
        a(f"buffer_load_dword v{32+jj}, v3, s[12:15], s25 offen offset:{(jj&1)*2048}")
        if jj & 1:
            a("s_add_u32 s25, s25, 4096")
    a("buffer_load_ushort v8, v5, s[4:7], s27 offen")
    a("s_waitcnt vmcnt(33)")
    a("v_max_f32_dpp v9, v6, v6 quad_perm:[1,0,3,2] row_mask:0xf bank_mask:0xf")
    a("v_sub_f32 v9, v6, v9")
    a("v_exp_f32 v9, v9")
    a("v_mul_f32 v10, v7, v9")
    a("v_add_f32_dpp v10, v10, v10 quad_perm:[1,0,3,2] row_mask:0xf bank_mask:0xf")
    a("v_rcp_f32 v11, v10")
    a("v_fma_f32 v12, -v10, v11, 1.0")
    a("v_fma_f32 v11, v12, v11, v11")
    a("v_mul_f32 v9, v9, v11")
    a("v_mov_b32 v12, 0")
    a("v_mov_b32 v13, 0")
    for jj in range(16):
        a(f"s_waitcnt vmcnt({32-jj})")
        a(f"v_fmac_f32_dpp v12, v9, v{16+jj} row_newbcast:{jj} row_mask:0xf bank_mask:0xf")
    for jj in range(16):
        a(f"s_waitcnt vmcnt({16-jj})")
        a(f"v_add_f32 v13, v13, v{32+jj}")
    a("v_lshlrev_b32 v14, 3, v0")
    a("ds_write_b64 v14, v[12:13]")
    a("s_waitcnt lgkmcnt(0)")
    a("s_barrier")
    a("s_cmp_lg_u32 s20, 0")
    a("s_cbranch_scc1 L2_done")
    a("ds_read_b64 v[16:17], v14 offset:512")
    a("ds_read_b64 v[18:19], v14 offset:1024")
    a("ds_read_b64 v[20:21], v14 offset:1536")
    a("s_waitcnt vmcnt(0) lgkmcnt(0)")
    a("v_add_f32 v12, v12, v16")
    a("v_add_f32 v18, v18, v20")
    a("v_add_f32 v13, v13, v17")
    a("v_add_f32 v19, v19, v21")
    a("v_add_f32 v12, v12, v18")
    a("v_add_f32 v13, v13, v19")
    a("v_cvt_pk_bf16_f32 v12, v12, v13")
    a("v_lshlrev_b32 v8, 16, v8")
    a("v_lshlrev_b32 v13, 16, v12")
    a("v_and_b32 v12, 0xffff0000, v12")
    a("v_add_f32 v8, v8, v13")
    a("v_cvt_pk_bf16_f32 v8, v8, v8")
    a("v_lshlrev_b32 v8, 16, v8")
    a("v_add_f32 v8, v8, v12")
    a("v_cvt_pk_bf16_f32 v8, v8, v8")
    a("buffer_store_short v8, v5, s[8:11], s27 offen")
    a.label("L2_done", pad=False)
    a("s_endpgm")
    desc = f""".amdhsa_kernel {K}
  .amdhsa_next_free_vgpr 48
  .amdhsa_next_free_sgpr 32
  .amdhsa_accum_offset 48
  .amdhsa_group_segment_fixed_size 0
  .amdhsa_kernarg_size 96
  .amdhsa_user_sgpr_count 2
  .amdhsa_user_sgpr_kernarg_segment_ptr 1
  .amdhsa_system_sgpr_workgroup_id_x 1
.end_amdhsa_kernel
"""
    return a.text(), desc


def build(NB=2, dbg=False):
    t1, d1 = kernel1(NB, dbg)
    t2, d2 = kernel2()
    s = HEADER
    s += f"; @launch kernel={NAME}_kernel grid=(256,1,1) block=(256,1,1) lds={LDS_TOTAL}\n"
    s += f"; @launch kernel=final_reduce_kernel grid=(32,1,1) block=(256,1,1) lds=2048\n"
    s += '.amdgcn_target "amdgcn-amd-amdhsa--gfx950"\n.text\n'
    s += t1 + t2
    s += '.section .rodata,"a"\n.p2align 6\n' + d1 + ".p2align 6\n" + d2
    return s


if __name__ == "__main__":
    NB = int(sys.argv[1]) if len(sys.argv) > 1 else 2
    out = sys.argv[2] if len(sys.argv) > 2 else "cdna_kernels/" + NAME + ".s"
    dbg = len(sys.argv) > 3 and sys.argv[3] == "dbg"
    open(out, "w").write(build(NB, dbg))
    print("wrote", out)
```
